```python
import torch

def _softmax(x, axis=-1):
    return torch.softmax(x, dim=axis)
def _gelu(x):
    return torch.nn.functional.gelu(x, approximate="tanh")
def _silu(x):
    return torch.nn.functional.silu(x)
def _sigmoid(x):
    return torch.sigmoid(x)
def _layernorm(x, axis=-1, eps=1e-5):
    m = x.mean(dim=axis, keepdim=True)
    v = x.var(dim=axis, keepdim=True, unbiased=False)
    return (x - m) / torch.sqrt(v + eps)
def _scatter_add(tgt, idx, src, axis=0):
    return tgt.clone().index_add_(axis, idx, src)
def _segment_sum(src, seg, n):
    out = torch.zeros((n,) + src.shape[1:], dtype=src.dtype)
    return out.index_add_(0, seg, src)
def _pad(x, pw):
    flat = tuple(v for pair in reversed(pw) for v in pair)
    return torch.nn.functional.pad(x, flat)

kernel_name = 'gated_mix__sliding_block__mha_block__prompt'

def setup_inputs():

    _w = (lambda a: (lambda t: t.to(torch.bfloat16) if t.is_floating_point() else t)(torch.as_tensor(a)))
    def _A_setup():
        B, S, D = 1, 2048, 1024
        return {
            "x": _w((lambda *s: torch.randn(*s, dtype=torch.bfloat16) * 0.05)(B, S, D)),
            "wqkv": _w((lambda *s: torch.randn(*s, dtype=torch.bfloat16) * 0.8)(D, 3 * D)),
            "wo": _w((lambda *s: torch.randn(*s, dtype=torch.bfloat16) * 0.05)(D, D)),
        }
    _A_in = _A_setup()

    def _B_setup():
        B, S, D, H = 1, 2048, 1024, 32
        return {
            "x": _w((lambda *s: torch.randn(*s, dtype=torch.bfloat16) * 0.05)(B, S, D)),
            "wqkv": _w((lambda *s: torch.randn(*s, dtype=torch.bfloat16) * 0.8)(D, 3 * D)),
            "wo": _w((lambda *s: torch.randn(*s, dtype=torch.bfloat16) * 0.1)(D, D)),
        }
    _B_in = _B_setup()

    return {
        "A_x": _A_in["x"],
        "A_wqkv": _A_in["wqkv"],
        "A_wo": _A_in["wo"],
        "B_x": _B_in["x"],
        "B_wqkv": _B_in["wqkv"],
        "B_wo": _B_in["wo"],
        "gate_w": _w((lambda *s: torch.randn(*s, dtype=torch.bfloat16) * 0.05)(1024) * 16.0),
    }

def reference(A_x, A_wqkv, A_wo, B_x, B_wqkv, B_wo, gate_w):
    def _A_ref(x, wqkv, wo):
        B, S, D = x.shape
        H = 32; Dh = D // H; W = 256
        qkv = (lambda x, *d: x.permute(*d))((x @ wqkv).reshape(B, S, 3, H, Dh), 2, 0, 3, 1, 4)
        q, k, v = qkv[0], qkv[1], qkv[2]
        scores = torch.einsum("bhqd,bhkd->bhqk", q, k) * (Dh ** -0.5)
        idx = torch.arange(S)
        mask = (idx[:, None] - idx[None, :] >= 0) & (idx[:, None] - idx[None, :] < W)
        scores = torch.where(mask[None, None], scores, -1e9)
        p = _softmax(scores, axis=-1)
        o = torch.einsum("bhqk,bhkd->bhqd", p, v)
        return (lambda x, *d: x.permute(*d))(o, 0, 2, 1, 3).reshape(B, S, D) @ wo

    def _B_ref(x, wqkv, wo):
        B, S, D = x.shape
        H = 32
        Dh = D // H
        qkv = (lambda x, *d: x.permute(*d))((x @ wqkv).reshape(B, S, 3, H, Dh), 2, 0, 3, 1, 4)
        q, k, v = qkv[0], qkv[1], qkv[2]
        scores = torch.einsum("bhqd,bhkd->bhqk", q, k) * (Dh ** -0.5)
        p = _softmax(scores, axis=-1)
        o = torch.einsum("bhqk,bhkd->bhqd", p, v)
        return (lambda x, *d: x.permute(*d))(o, 0, 2, 1, 3).reshape(B, S, D) @ wo

    x = A_x
    g = _sigmoid((x * gate_w).sum(-1, keepdims=True))
    a = _A_ref(x, A_wqkv, A_wo)
    b = _B_ref(x, B_wqkv, B_wo)
    return g * a + (1 - g) * b
```

```python
class K:
    def __init__(self, name):
        self.name = name
        self.L = []
        self.nlab = 0
    def __call__(self, s):
        for line in s.strip("\n").split("\n"):
            line = line.strip()
            if line:
                self.L.append("    " + line)
    def label(self, l):
        self.L.append(f"{l}:")
    def newlabel(self, base="L"):
        self.nlab += 1
        return f"{base}_{self.name}_{self.nlab}"
    def comment(self, s):
        self.L.append(f"    ; {s}")
    def text(self):
        return "\n".join(self.L) + "\n"

def vr(b, n=1):
    return f"v{b}" if n == 1 else f"v[{b}:{b+n-1}]"
def ar(b, n=1):
    return f"a{b}" if n == 1 else f"a[{b}:{b+n-1}]"
def sr(b, n=1):
    return f"s{b}" if n == 1 else f"s[{b}:{b+n-1}]"

def kernel_text(k, nvgpr, accum, nsgpr=96):
    name = k.name
    return f""".text
.globl {name}
.p2align 8
.type {name},@function
{name}:
{k.text()}
.section .rodata,"a"
.p2align 6
.amdhsa_kernel {name}
  .amdhsa_next_free_vgpr {nvgpr}
  .amdhsa_next_free_sgpr {nsgpr}
  .amdhsa_accum_offset {accum}
  .amdhsa_group_segment_fixed_size 0
  .amdhsa_kernarg_size 80
  .amdhsa_user_sgpr_count 2
  .amdhsa_user_sgpr_kernarg_segment_ptr 1
  .amdhsa_system_sgpr_workgroup_id_x 1
.end_amdhsa_kernel
"""

def interleave(mfmas, fillers):
    out = []
    for i, m in enumerate(mfmas):
        out.append(m)
        out += fillers.get(i, [])
    return out

QOFF = 0
KVOFF = 8 << 20
OOFF = 24 << 20
GOFF = 32 << 20
WS_USED = (32 << 20) + 16384
QSCALE = 1.4426950408889634 / (32 ** 0.5)
import struct
def f32bits(x):
    return struct.unpack("<I", struct.pack("<f", x))[0]
```

```python
from common import *
from k_qkv import load_kernargs

LDS_ATT = 4 * 32768

def gen_attn():
    k = K("attn_kernel")
    S = [0, 16]
    O = 32; NEGM = 48; MD = 64; P = 80; KF = 88; VF = 96; Q = 104; QA = 112
    ONES = 120; LA = 124; L16 = 128; RC = 129; RN = 130; G = 132
    MF = 136; T = 152
    SC = 168
    M = 169
    CM = 170
    M32 = "v_mfma_f32_32x32x16_bf16"
    M16 = "v_mfma_f32_16x16x32_bf16"

    k("s_cmp_ge_u32 s2, 256")
    k("s_cbranch_scc1 L_att_end")
    load_kernargs(k)
    k(f"""
    v_and_b32 v{T}, 63, v0
    v_lshrrev_b32 v{T+1}, 6, v0
    s_nop 0
    v_readfirstlane_b32 s20, v{T+1}
    s_and_b32 s36, s2, 7
    s_lshr_b32 s37, s2, 3
    s_lshl_b32 s21, s36, 2
    s_lshr_b32 s38, s37, 3
    s_add_u32 s21, s21, s38            ; head
    s_and_b32 s22, s37, 7              ; qb
    s_lshl_b32 s23, s22, 3
    s_add_u32 s23, s23, s20
    v_lshlrev_b32 v{L16}, 4, v{T}
    ; ONES: lane l: m=l%16, chunk=l/16 ; ones if (chunk&1)==((m>>2)&1)
    v_bfe_u32 v{T+2}, v{T}, 4, 1
    v_bfe_u32 v{T+3}, v{T}, 2, 1
    v_xor_b32 v{T+2}, v{T+2}, v{T+3}
    v_subrev_u32 v{T+2}, 1, v{T+2}
    v_and_b32 v{ONES}, 0x3f803f80, v{T+2}
    v_mov_b32 v{ONES+1}, v{ONES}
    v_mov_b32 v{ONES+2}, v{ONES}
    v_mov_b32 v{ONES+3}, v{ONES}
    ; CM = (l&31) - 4*(l>>5)
    v_and_b32 v{T+2}, 31, v{T}
    v_lshrrev_b32 v{T+3}, 5, v{T}
    v_lshlrev_b32 v{T+3}, 2, v{T+3}
    v_sub_u32 v{CM}, v{T+2}, v{T+3}
    v_lshlrev_b32 v{T+4}, 3, v{T+2}
    s_waitcnt lgkmcnt(0)
    s_mov_b32 s4, s66
    s_mov_b32 s5, s67
    s_mov_b32 s6, {WS_USED}
    s_mov_b32 s7, 0x20000
    ; Q offsets
    s_lshl_b32 s36, s21, 6
    s_add_u32 s36, s36, s23            ; head*64+T
    s_lshl_b32 s37, s36, 11            ; Q_A offset
    s_add_u32 s38, s37, {32*64*2048}   ; Q_B offset
    buffer_load_dwordx4 {vr(Q,4)}, v{L16}, s[4:7], s38 offen
    buffer_load_dwordx4 {vr(Q+4,4)}, v{L16}, s[4:7], s38 offen offset:1024
    buffer_load_dwordx4 {vr(QA,4)}, v{L16}, s[4:7], s37 offen
    buffer_load_dwordx4 {vr(QA+4,4)}, v{L16}, s[4:7], s37 offen offset:1024
    s_lshl_b32 s39, s23, 8
    s_add_u32 s39, s39, {GOFF}
    buffer_load_dwordx2 {vr(G,2)}, v{T+4}, s[4:7], s39 offen
    s_lshl_b32 s24, s21, 18            ; head*64*4096
    s_add_u32 s24, s24, {KVOFF}
    s_add_u32 s25, s24, {32*64*4096}
    s_lshl_b32 s36, s20, 12            ; wave*4096
    s_add_u32 s26, s25, s36
    s_mov_b32 s27, s36
    s_lshl_b32 s37, s22, 15
    s_add_u32 s28, s24, s37
    s_sub_u32 s28, s28, 32768
    s_add_u32 s28, s28, s36
    """)
    def dma():
        r = ["s_mov_b32 m0, s27", "s_nop 0"]
        for i in range(4):
            r.append(f"buffer_load_dwordx4 v{L16}, s[4:7], s26 offen offset:{i*1024} lds")
        r += ["s_add_u32 s26, s26, 32768", "s_add_u32 s27, s27, 32768", "s_and_b32 s27, s27, 0x1ffff"]
        return r
    for c in range(3):
        for s in dma(): k(s)
    for i in range(16):
        k(f"v_mov_b32 v{O+i}, 0")
    for i in range(4):
        k(f"v_mov_b32 v{LA+i}, 0")
        k(f"v_mov_b32 v{P+4+i}, 0")
        k(f"v_mov_b32 v{VF+4+i}, 0")
    for i in range(16):
        rc = (i // 4) * 8 + i % 4
        k(f"v_subrev_u32 v{MD+i}, {rc}, v{CM}")
        k(f"v_ashrrev_i32 v{MD+i}, 31, v{MD+i}")
        k(f"v_and_b32 v{MD+i}, 0xff800000, v{MD+i}")
        k(f"v_xor_b32 v{MF+i}, 0xff800000, v{MD+i}")
    k(f"""
    v_mov_b32 v{RC}, v{L16}
    v_add_u32 v{RN}, 0x8000, v{L16}
    s_mov_b32 s29, 0
    s_mov_b32 s30, 0x8000
    s_mov_b32 s31, 0                   ; phase (0 = B, 1 = A)
    s_waitcnt vmcnt(8)
    s_barrier
    """)

    def rd(dst, addr, off):
        return f"ds_read_b128 {vr(dst,4)}, v{addr} offset:{off}"
    def maxtree(src, dst):
        r = [f"v_max3_f32 v{T}, v{src}, v{src+1}, v{src+2}",
             f"v_max3_f32 v{T+1}, v{src+3}, v{src+4}, v{src+5}",
             f"v_max3_f32 v{T+2}, v{src+6}, v{src+7}, v{src+8}",
             f"v_max3_f32 v{T+3}, v{src+9}, v{src+10}, v{src+11}",
             f"v_max3_f32 v{T+4}, v{src+12}, v{src+13}, v{src+14}",
             f"v_max3_f32 v{T}, v{T}, v{T+1}, v{src+15}",
             f"v_max3_f32 v{T+2}, v{T+2}, v{T+3}, v{T+4}",
             f"v_max_f32 v{T}, v{T}, v{T+2}",
             f"v_mov_b32 v{T+1}, v{T}",
             "s_nop 1",
             f"v_permlane32_swap_b32 v{T}, v{T+1}",
             "s_nop 1",
             f"v_max_f32 v{dst}, v{T}, v{T+1}"]
        return r

    def first_tile(addr, off0, off1, cblock):
        k(rd(KF, addr, off0)); k(rd(KF + 4, addr, off0 + 1024))
        k("s_waitcnt lgkmcnt(0)")
        c = "0" if cblock is None else vr(cblock, 16)
        k(f"{M32} {vr(S[1],16)}, {vr(KF,4)}, {vr(Q,4)}, {c}")
        k(f"{M32} {vr(S[1],16)}, {vr(KF+4,4)}, {vr(Q+4,4)}, {vr(S[1],16)}")
        k("s_nop 15")
        for s in maxtree(S[1], M): k(s)
        for i in range(16):
            k(f"v_sub_f32 v{NEGM+i}, 0, v{M}")
        if cblock is not None:
            for i in range(16):
                k(f"v_sub_f32 v{MD+i}, v{MD+i}, v{M}")
                k(f"v_sub_f32 v{MF+i}, v{MF+i}, v{M}")
        k("s_nop 1")
        c = vr(NEGM, 16) if cblock is None else vr(cblock, 16)
        k(f"{M32} {vr(S[0],16)}, {vr(KF,4)}, {vr(Q,4)}, {c}")
        k(f"{M32} {vr(S[0],16)}, {vr(KF+4,4)}, {vr(Q+4,4)}, {vr(S[0],16)}")
        k(rd(KF, addr, off1)); k(rd(KF + 4, addr, off1 + 1024))
        k(rd(VF, addr, off0 + 2048))
        k("s_nop 15")

    def body(par, vf1, kn, vf0n, cnext=NEGM, extra=()):
        sc, sn = S[par], S[1 - par]
        e = lambda i: f"v_exp_f32 v{sc+i}, v{sc+i}"
        c = lambda j: f"v_cvt_pk_bf16_f32 v{P+j}, v{sc+2*j}, v{sc+2*j+1}"
        seq = [e(0), e(1), "s_waitcnt lgkmcnt(3)",
               f"{M32} {vr(O,16)}, {vr(VF+4,4)}, {vr(P+4,4)}, {vr(O,16)}",
               rd(VF + 4, vf1[0], vf1[1] + 3072),
               e(2), e(3),
               f"{M16} {vr(LA,4)}, {vr(ONES,4)}, {vr(P+4,4)}, {vr(LA,4)}",
               e(4), e(5), "s_waitcnt lgkmcnt(2)",
               f"{M32} {vr(sn,16)}, {vr(KF,4)}, {vr(Q,4)}, {vr(cnext,16)}",
               e(6), e(7), c(0), c(1),
               f"{M32} {vr(sn,16)}, {vr(KF+4,4)}, {vr(Q+4,4)}, {vr(sn,16)}",
               rd(KF, kn[0], kn[1]), rd(KF + 4, kn[0], kn[1] + 1024),
               c(2), c(3), e(8), e(9), "s_waitcnt lgkmcnt(3)",
               f"{M32} {vr(O,16)}, {vr(VF,4)}, {vr(P,4)}, {vr(O,16)}",
               rd(VF, vf0n[0], vf0n[1] + 2048),
               e(10), e(11),
               f"{M16} {vr(LA,4)}, {vr(ONES,4)}, {vr(P,4)}, {vr(LA,4)}"]
        seq += list(extra)
        seq += [e(12), e(13), e(14), e(15), c(4), c(5), c(6), c(7)]
        for s in seq: k(s)

    def tail():
        k("s_waitcnt lgkmcnt(0)")
        k("s_nop 0")
        k(f"{M32} {vr(O,16)}, {vr(VF+4,4)}, {vr(P+4,4)}, {vr(O,16)}")
        k(f"{M16} {vr(LA,4)}, {vr(ONES,4)}, {vr(P+4,4)}, {vr(LA,4)}")

    first_tile(RC, 0, 4096, None)
    k.label("L_att_loop")
    for j in range(8):
        loc = lambda t: (RC, t * 4096) if t < 8 else (RN, (t - 8) * 4096)
        extra = []
        if j == 6:
            k("s_waitcnt vmcnt(4)")
            k("s_barrier")
            extra = ["s_cmp_eq_u32 s29, 5", "s_cselect_b32 s26, s28, s26",
                     "s_cmp_eq_u32 s29, 7", "s_cselect_b32 s26, 0x40000000, s26"] + dma()
        if j == 7:
            extra = ["s_add_u32 s30, s30, 0x8000", "s_and_b32 s30, s30, 0x1ffff",
                     "s_add_u32 s29, s29, 1", "s_cmp_lt_u32 s29, 8",
                     f"v_mov_b32 v{RC}, v{RN}", f"v_add_u32 v{RN}, s30, v{L16}"]
        body(j % 2, loc(j), loc(j + 2), loc(j + 1), extra=extra)
    k("s_cbranch_scc1 L_att_loop")
    tail()
    k(f"""
    s_waitcnt vmcnt(0)
    s_barrier
    v_mov_b32 v{SC}, v{G+1}
    s_lshl_b32 s32, s23, 6
    s_add_u32 s32, s32, s21
    s_add_u32 s33, s32, 32
    s_lshl_b32 s33, s33, 11
    s_add_u32 s33, s33, {OOFF}
    s_mov_b32 s34, s25
    s_mov_b32 s35, 4096                 ; step
    s_mov_b32 s40, 64                   ; ntiles
    """)
    k.label("L_att_epi")
    k("s_nop 15")
    k(f"v_add_f32 v{T}, |v{O}|, |v{O+1}|")
    for i in range(2, 16):
        k(f"v_add_f32 v{T}, v{T}, |v{O+i}|")
    k(f"""
    v_mov_b32 v{T+1}, 0x7f800000
    v_cmp_nlt_f32 s[42:43], v{T}, v{T+1}
    v_mov_b32 v{T+1}, 0x5d800000        ; 2^60
    v_cmp_nlt_f32 vcc, v{LA}, v{T+1}
    s_nop 3
    s_or_b64 vcc, vcc, s[42:43]
    s_cbranch_vccnz L_att_fb
    """)
    k.label("L_att_store")
    k(f"""
    v_rcp_f32 v{T}, v{LA}
    s_nop 0
    v_mul_f32 v{T}, v{T}, v{SC}
    """)
    for i in range(16):
        k(f"v_mul_f32 v{O+i}, v{O+i}, v{T}")
    for j in range(8):
        k(f"v_cvt_pk_bf16_f32 v{T+j+8}, v{O+2*j}, v{O+2*j+1}")
    k(f"""
    buffer_store_dwordx4 {vr(T+8,4)}, v{L16}, s[4:7], s33 offen
    buffer_store_dwordx4 {vr(T+12,4)}, v{L16}, s[4:7], s33 offen offset:1024
    s_cmp_lg_u32 s31, 0
    s_cbranch_scc1 L_att_end
    """)
    k("s_mov_b32 s31, 1")
    for i in range(8):
        k(f"v_mov_b32 v{Q+i}, v{QA+i}")
    for i in range(16):
        k(f"v_mov_b32 v{O+i}, 0")
    for i in range(4):
        k(f"v_mov_b32 v{LA+i}, 0")
        k(f"v_mov_b32 v{P+4+i}, 0")
        k(f"v_mov_b32 v{VF+4+i}, 0")
    k(f"""
    s_lshl_b32 s36, s20, 12
    v_add_u32 v{RC}, s36, v{L16}
    v_mov_b32 v{SC}, v{G}
    s_lshl_b32 s33, s32, 11
    s_add_u32 s33, s33, {OOFF}
    s_lshl_b32 s34, s23, 12
    s_add_u32 s34, s34, s24
    s_mov_b32 s35, -4096
    s_min_u32 s40, s23, 8
    s_add_u32 s40, s40, 1               ; ntiles
    """)
    first_tile(RC, 8 * 4096, 7 * 4096, MD)
    for u in range(9):
        loc = lambda t: (RC, max(8 - t, 0) * 4096)
        body(u % 2, loc(u), loc(u + 2), loc(u + 1), cnext=(MF if u + 1 == 8 else NEGM))
        if u < 8:
            k(f"s_cmp_le_u32 s40, {u+1}")
            k("s_cbranch_scc1 L_att_tailA")
    k.label("L_att_tailA")
    tail()
    k("s_branch L_att_epi")

    k.label("L_att_fb")
    for i in range(16):
        k(f"v_mov_b32 v{O+i}, 0")
    for i in range(4):
        k(f"v_mov_b32 v{LA+i}, 0")
    k(f"v_mov_b32 v{M}, 0xff800000")
    k("s_mov_b32 s41, 0")
    k.label("L_att_fbloop")
    k(f"""
    buffer_load_dwordx4 {vr(KF,4)}, v{L16}, s[4:7], s34 offen
    buffer_load_dwordx4 {vr(KF+4,4)}, v{L16}, s[4:7], s34 offen offset:1024
    buffer_load_dwordx4 {vr(VF,4)}, v{L16}, s[4:7], s34 offen offset:2048
    buffer_load_dwordx4 {vr(VF+4,4)}, v{L16}, s[4:7], s34 offen offset:3072
    s_mov_b32 s44, 0
    s_mov_b32 s45, 0
    s_cmp_eq_u32 s41, 0
    s_cselect_b32 s44, 0xff800000, s44
    s_cmp_eq_u32 s41, 8
    s_cselect_b32 s44, 0xff800000, s44
    s_cselect_b32 s45, 0xff800000, s45
    s_cmp_eq_u32 s31, 0
    s_cselect_b32 s44, 0, s44
    s_cselect_b32 s45, 0, s45
    """)
    for i in range(16):
        rc = (i // 4) * 8 + i % 4
        k(f"v_subrev_u32 v{NEGM+i}, {rc}, v{CM}")
        k(f"v_ashrrev_i32 v{NEGM+i}, 31, v{NEGM+i}")
        k(f"v_and_b32 v{NEGM+i}, s44, v{NEGM+i}")
        k(f"v_xor_b32 v{NEGM+i}, s45, v{NEGM+i}")
    k("s_waitcnt vmcnt(0)")
    k(f"{M32} {vr(S[0],16)}, {vr(KF,4)}, {vr(Q,4)}, {vr(NEGM,16)}")
    k(f"{M32} {vr(S[0],16)}, {vr(KF+4,4)}, {vr(Q+4,4)}, {vr(S[0],16)}")
    k("s_nop 15")
    for s in maxtree(S[0], T + 5): k(s)
    k(f"""
    v_max_f32 v{T+5}, v{T+5}, v{M}         ; mnew
    v_sub_f32 v{T+6}, v{M}, v{T+5}
    v_exp_f32 v{T+6}, v{T+6}               ; alpha
    v_mov_b32 v{M}, v{T+5}
    """)
    for i in range(16):
        k(f"v_mul_f32 v{O+i}, v{O+i}, v{T+6}")
    for i in range(4):
        k(f"v_mul_f32 v{LA+i}, v{LA+i}, v{T+6}")
    for i in range(16):
        k(f"v_sub_f32 v{S[0]+i}, v{S[0]+i}, v{M}")
    for i in range(16):
        k(f"v_exp_f32 v{S[0]+i}, v{S[0]+i}")
    k("s_nop 0")
    for j in range(8):
        k(f"v_cvt_pk_bf16_f32 v{P+j}, v{S[0]+2*j}, v{S[0]+2*j+1}")
    k(f"""
    s_nop 1
    {M32} {vr(O,16)}, {vr(VF,4)}, {vr(P,4)}, {vr(O,16)}
    {M32} {vr(O,16)}, {vr(VF+4,4)}, {vr(P+4,4)}, {vr(O,16)}
    {M16} {vr(LA,4)}, {vr(ONES,4)}, {vr(P,4)}, {vr(LA,4)}
    {M16} {vr(LA,4)}, {vr(ONES,4)}, {vr(P+4,4)}, {vr(LA,4)}
    s_add_u32 s34, s34, s35
    s_add_u32 s41, s41, 1
    s_cmp_lt_u32 s41, s40
    s_nop 15
    s_cbranch_scc1 L_att_fbloop
    s_branch L_att_store
    """)
    k.label("L_att_end")
    k("s_endpgm")
    return kernel_text(k, 176, 176), ("attn_kernel", 256, 512, LDS_ATT)
```

```python
from common import *
from k_qkv import load_kernargs

R = 8
LDS_OUT = R * 8192

def gen_out():
    k = K("oproj_kernel")
    ACC = [0, 16]
    WA = [32, 33]
    WV = 34
    L16 = 36
    OV = 37
    T = 40
    OF = lambda slot, u: slot * 16 + u * 4
    WF = lambda st, u, cb: 128 + st * 32 + u * 8 + cb * 4
    M32 = "v_mfma_f32_32x32x16_bf16"

    k("s_cmp_ge_u32 s2, 256")
    k("s_cbranch_scc1 L_op_end")
    load_kernargs(k)
    L = f"v{T}"
    a, b, c, d = [f"v{T+1+i}" for i in range(4)]
    k(f"""
    v_and_b32 {L}, 63, v0
    v_lshrrev_b32 {a}, 6, v0
    s_nop 0
    v_readfirstlane_b32 s20, {a}
    s_and_b32 s36, s2, 7
    s_lshr_b32 s37, s2, 3
    s_and_b32 s21, s36, 3
    s_lshl_b32 s21, s21, 2
    s_and_b32 s38, s37, 3
    s_add_u32 s21, s21, s38            ; m_tile 0..15
    s_lshr_b32 s22, s36, 2
    s_lshl_b32 s22, s22, 3
    s_lshr_b32 s38, s37, 2
    s_add_u32 s22, s22, s38            ; n_tile 0..15
    s_lshl_b32 s23, s21, 2
    s_add_u32 s23, s23, s20            ; T
    v_lshlrev_b32 v{L16}, 4, {L}
    v_lshrrev_b32 {a}, 5, {L}
    v_lshlrev_b32 {a}, 2, {a}          ; 4h
    v_bfe_u32 {b}, {L}, 2, 2           ; r
    v_add_u32 {a}, {a}, {b}
    v_lshlrev_b32 {a}, 7, {a}          ; (4h+r)*128
    v_lshrrev_b32 {b}, 1, {b}
    v_lshl_add_u32 {a}, {b}, 6, {a}    ; + s*64
    v_and_b32 {b}, 1, {L}              ; c4%2
    v_lshl_add_u32 {a}, {b}, 5, {a}    ; *4 chunks*8B
    v_bfe_u32 {b}, {L}, 4, 1           ; nh
    v_lshl_add_u32 {a}, {b}, 4, {a}
    v_bfe_u32 {b}, {L}, 1, 1           ; c4/2
    v_lshl_add_u32 v{WA[0]}, {b}, 3, {a}
    v_xor_b32 v{WA[1]}, 64, v{WA[0]}
    """)
    for i in range(2):
        k(f"""
        s_lshl_b32 s38, s20, 4
        s_add_u32 s38, s38, {i*8}
        v_lshrrev_b32 {a}, 3, {L}
        v_add_u32 {a}, s38, {a}            ; k row
        v_bfe_u32 {b}, {a}, 1, 1
        v_bfe_u32 {c}, {L}, 2, 1           ; j'
        v_xor_b32 {b}, {b}, {c}            ; j
        v_lshlrev_b32 {a}, 11, {a}
        v_lshl_add_u32 {a}, {b}, 6, {a}
        v_and_b32 {b}, 3, {L}
        v_lshl_add_u32 {a}, {b}, 4, {a}
        v_subrev_u32 v{WV+i}, {i*1024}, {a}
        """)
    k(f"""
    v_and_b32 {a}, 31, {L}
    v_lshlrev_b32 {a}, 11, {a}
    v_lshrrev_b32 {b}, 5, {L}
    v_lshl_add_u32 v{OV}, {b}, 5, {a}
    s_waitcnt lgkmcnt(0)
    s_mov_b32 s4, s66
    s_mov_b32 s5, s67
    s_mov_b32 s6, {WS_USED}
    s_mov_b32 s7, 0x20000
    s_mov_b32 s8, s52
    s_mov_b32 s9, s53
    s_mov_b32 s10, 0x200000
    s_mov_b32 s11, 0x20000
    s_mov_b32 s12, s62
    s_mov_b32 s13, s63
    s_mov_b32 s14, 0x400000
    s_mov_b32 s15, 0x20000
    s_lshl_b32 s24, s23, 17
    s_add_u32 s24, s24, {OOFF}
    s_lshl_b32 s25, s22, 7             ; W soffset (n0*2)
    s_lshl_b32 s26, s20, 11
    s_mov_b32 s27, 0
    """)
    def loads(slot):
        r = [f"s_add_u32 m0, s26, {slot*8192}", "s_nop 0"]
        for i in range(2):
            r.append(f"buffer_load_dwordx4 v{WV+i}, s[8:11], s25 offen offset:{i*1024} lds")
        for u in range(4):
            r.append(f"buffer_load_dwordx4 {ar(OF(slot,u),4)}, v{L16}, s[4:7], s24 offen offset:{u*1024}")
        r += ["s_add_u32 s24, s24, 4096", "s_add_u32 s25, s25, 0x20000", "s_add_u32 s27, s27, 1",
              "s_cmp_eq_u32 s27, 16",
              "s_cselect_b32 s8, s58, s8", "s_cselect_b32 s9, s59, s9",
              "s_cselect_b32 s36, 0x200000, 0", "s_sub_u32 s25, s25, s36",
              "s_cmp_ge_u32 s27, 32", "s_cselect_b32 s24, 0x40000000, s24"]
        return r
    def wreads(st, slot):
        r = []
        for u in range(4):
            for cb in range(2):
                for t in range(2):
                    off = slot * 8192 + (u // 2) * 4096 + (u % 2) * 2048 + t * 1024
                    r.append(f"ds_read_b64_tr_b16 {ar(WF(st,u,cb)+2*t,2)}, v{WA[cb]} offset:{off}")
        return r
    for s in range(R - 1):
        for x in loads(s): k(x)
    for i in range(32):
        k(f"v_mov_b32 v{i}, 0")
    k(f"s_waitcnt vmcnt({6*(R-2)})")
    k("s_barrier")
    for x in wreads(0, 0): k(x)
    k("s_mov_b32 s28, 0")
    k.label("L_op_loop")
    for s in range(R):
        st = s % 2
        k(f"s_waitcnt vmcnt({6*(R-3)}) lgkmcnt(0)")
        k("s_barrier")
        mf = [f"{M32} {vr(ACC[cb],16)}, {ar(WF(st,u,cb),4)}, {ar(OF(s,u),4)}, {vr(ACC[cb],16)}"
              for u in range(4) for cb in range(2)]
        rd = wreads(1 - st, (s + 1) % R)
        ld = loads((s - 1) % R)
        fill = {}
        for g in range(4):
            fill[g] = rd[4 * g:4 * g + 4]
        fill[4] = ld[:4]
        fill[5] = ld[4:6]
        fill[6] = ld[6:8]
        fill[7] = ld[8:]
        if s == R - 1:
            fill[7] = fill[7] + ["s_add_u32 s28, s28, 1", f"s_cmp_lt_u32 s28, {32//R}"]
        for x in interleave(mf, fill): k(x)
    k("s_cbranch_scc1 L_op_loop")
    k(f"""
    s_nop 15
    s_lshl_b32 s36, s23, 16            ; T*32*2048
    s_lshl_b32 s37, s22, 7
    s_add_u32 s36, s36, s37
    """)
    for cb in range(2):
        b0 = ACC[cb]
        for j in range(8):
            k(f"v_cvt_pk_bf16_f32 v{b0+j}, v{b0+2*j}, v{b0+2*j+1}")
        k(f"buffer_store_dwordx4 {vr(b0,4)}, v{OV}, s[12:15], s36 offen offset:{cb*64}")
        k(f"buffer_store_dwordx4 {vr(b0+4,4)}, v{OV}, s[12:15], s36 offen offset:{cb*64+16}")
    k.label("L_op_end")
    k("s_endpgm")
    return kernel_text(k, 64 + 192, 64), ("oproj_kernel", 256, 256, LDS_OUT)
```

```python
from common import *

XRING = 3
WRING = 5
XSLAB = 32768
WSTG = 12288
WBASE = XRING * XSLAB
LDS_QKV = WBASE + WRING * WSTG

def load_kernargs(k):
    k("""
    s_load_dwordx16 s[48:63], s[0:1], 0
    s_load_dwordx4 s[64:67], s[0:1], 64
    """)

def gen_qkv():
    k = K("qkv_kernel")
    ACC = lambda tb, cb: (tb * 3 + cb) * 16
    XL = 192
    WL = 196
    XV = 197
    WV = 201
    ST = 204
    XA = 205
    WA = 206
    LANE = 207
    T0 = 208
    def XF(f, tb): return f * 28 + tb * 4
    def WF(f, cb): return f * 28 + 16 + cb * 4

    k("s_cmp_ge_u32 s2, 256")
    k("s_cbranch_scc1 L_qkv_end")
    load_kernargs(k)
    k(f"""
    v_and_b32 v{LANE}, 63, v0
    v_lshrrev_b32 v{T0}, 6, v0
    s_nop 0
    v_readfirstlane_b32 s20, v{T0}
    s_and_b32 s36, s2, 7
    s_lshr_b32 s37, s2, 3
    s_lshr_b32 s21, s20, 1            ; wm
    s_and_b32 s22, s20, 1             ; wn
    s_and_b32 s23, s36, 1
    s_lshl_b32 s23, s23, 2
    s_and_b32 s38, s37, 3
    s_add_u32 s23, s23, s38           ; m_tile
    s_lshr_b32 s24, s36, 1
    s_lshl_b32 s24, s24, 3
    s_lshr_b32 s38, s37, 2
    s_add_u32 s24, s24, s38           ; n_tile
    s_lshr_b32 s25, s24, 4            ; mat
    s_and_b32 s26, s24, 15            ; jpair
    """)
    L = f"v{LANE}"
    a, b, c, d, e = [f"v{T0+i}" for i in range(5)]
    k(f"""
    v_and_b32 {a}, 31, {L}
    s_lshl_b32 s38, s21, 7
    v_add_u32 {a}, s38, {a}            ; R_local
    v_lshlrev_b32 {a}, 7, {a}          ; *128
    v_lshrrev_b32 {b}, 5, {L}          ; h
    v_lshrrev_b32 {c}, 1, {L}
    v_and_b32 {c}, 7, {c}              ; sw
    """)
    for ks in range(4):
        k(f"""
        v_add_u32 {d}, {2*ks}, {b}
        v_xor_b32 {d}, {d}, {c}
        v_lshl_add_u32 v{XL+ks}, {d}, 4, {a}
        """)
    k(f"""
    v_lshrrev_b32 {a}, 5, {L}          ; h
    v_lshlrev_b32 {a}, 3, {a}          ; h*8
    v_bfe_u32 {b}, {L}, 2, 2           ; r
    v_add_u32 {a}, {a}, {b}
    v_mul_u32_u24 {a}, 384, {a}
    v_lshrrev_b32 {b}, 1, {b}          ; r>>1
    v_xor_b32 {b}, s22, {b}
    v_lshl_add_u32 {a}, {b}, 6, {a}
    v_bfe_u32 {b}, {L}, 4, 1           ; nh
    v_lshl_add_u32 {a}, {b}, 5, {a}
    v_and_b32 {b}, 3, {L}
    v_lshl_add_u32 v{WL}, {b}, 3, {a}
    """)
    for i in range(4):
        k(f"""
        s_lshl_b32 s38, s20, 5
        s_add_u32 s38, s38, {i*8}
        v_lshrrev_b32 {a}, 3, {L}
        v_add_u32 {a}, s38, {a}            ; row
        v_lshrrev_b32 {b}, 1, {a}
        v_and_b32 {b}, 7, {b}
        v_and_b32 {c}, 7, {L}
        v_xor_b32 {b}, {b}, {c}            ; c
        v_lshlrev_b32 {a}, 11, {a}
        v_lshl_add_u32 {a}, {b}, 4, {a}
        v_subrev_u32 v{XV+i}, {i*1024}, {a}
        """)
    for i in range(3):
        k(f"""
        s_mul_i32 s38, s20, 192
        s_add_u32 s38, s38, {i*64}
        v_add_u32 {a}, s38, {L}            ; p
        v_mul_u32_u24 {b}, 2731, {a}
        v_lshrrev_b32 {b}, 16, {b}         ; k
        v_mul_u32_u24 {c}, 24, {b}
        v_sub_u32 {c}, {a}, {c}            ; u
        v_lshrrev_b32 {d}, 2, {c}          ; j'
        v_bfe_u32 {e}, {b}, 1, 1
        v_xor_b32 {d}, {d}, {e}            ; j
        v_mul_u32_u24 {a}, 6144, {b}
        v_lshrrev_b32 {e}, 1, {d}          ; cb
        v_lshl_add_u32 {a}, {e}, 11, {a}
        v_and_b32 {e}, 1, {d}
        v_lshl_add_u32 {a}, {e}, 6, {a}
        v_and_b32 {e}, 3, {c}
        v_lshl_add_u32 {a}, {e}, 4, {a}
        v_subrev_u32 v{WV+i}, {i*1024}, {a}
        """)
    k(f"v_lshlrev_b32 v{ST}, 4, {L}")
    k(f"v_lshlrev_b32 {a}, 5, {L}")
    k(f"""
    s_waitcnt lgkmcnt(0)
    s_mov_b32 s4, s48
    s_mov_b32 s5, s49
    s_mov_b32 s6, 0x400000
    s_mov_b32 s7, 0x20000
    s_cmp_eq_u32 s25, 0
    s_cselect_b32 s8, s50, s56
    s_cselect_b32 s9, s51, s57
    s_mov_b32 s10, 0x600000
    s_mov_b32 s11, 0x20000
    s_mov_b32 s12, s66
    s_mov_b32 s13, s67
    s_mov_b32 s14, {WS_USED}
    s_mov_b32 s15, 0x20000
    s_mov_b32 s16, s60
    s_mov_b32 s17, s61
    s_mov_b32 s18, 2048
    s_mov_b32 s19, 0x20000
    """)
    GX = 216
    GW = 232
    k(f"""
    s_lshl_b32 s39, s2, 3
    s_lshl_b32 s38, s20, 1
    s_add_u32 s39, s39, s38            ; token0
    s_lshl_b32 s40, s39, 11
    buffer_load_dwordx4 v[{GX}:{GX+3}], {a}, s[4:7], s40 offen
    buffer_load_dwordx4 v[{GX+4}:{GX+7}], {a}, s[4:7], s40 offen offset:16
    buffer_load_dwordx4 v[{GX+8}:{GX+11}], {a}, s[4:7], s40 offen offset:2048
    buffer_load_dwordx4 v[{GX+12}:{GX+15}], {a}, s[4:7], s40 offen offset:2064
    buffer_load_dwordx4 v[{GW}:{GW+3}], {a}, s[16:19], 0 offen
    buffer_load_dwordx4 v[{GW+4}:{GW+7}], {a}, s[16:19], 0 offen offset:16
    """)
    k(f"""
    s_lshl_b32 s28, s23, 19            ; m_tile*256*2048
    s_lshl_b32 s29, s26, 7             ; jpair*128
    s_lshl_b32 s30, s20, 12
    s_mul_i32 s31, s20, 3072
    s_add_u32 s31, s31, {WBASE}
    s_mov_b32 s27, 0
    """)
    def dma_x(half):
        r = []
        if half == 0:
            r.append("s_mov_b32 m0, s30")
            so = "s28"
            r.append("s_nop 0")
        else:
            r.append("s_add_u32 m0, s30, 16384")
            r.append("s_add_u32 s36, s28, 0x40000")
            so = "s36"
        for i in range(4):
            r.append(f"buffer_load_dwordx4 v{XV+i}, s[4:7], {so} offen offset:{i*1024} lds")
        return r
    def adv_x(loop):
        r = ["s_add_u32 s28, s28, 128"]
        if loop:
            r += ["s_cmp_lt_u32 s27, 13", "s_cselect_b32 s28, s28, 0x40000000"]
        r += ["s_add_u32 s30, s30, 32768", f"s_cmp_ge_u32 s30, {WBASE}",
              f"s_cselect_b32 s36, {WBASE}, 0", "s_sub_u32 s30, s30, s36"]
        return r
    def dma_w():
        r = ["s_mov_b32 m0, s31", "s_nop 0"]
        for i in range(3):
            r.append(f"buffer_load_dwordx4 v{WV+i}, s[8:11], s29 offen offset:{i*1024} lds")
        return r
    def adv_w():
        return ["s_add_u32 s29, s29, 196608", f"s_add_u32 s31, s31, {WSTG}",
                f"s_cmp_ge_u32 s31, {LDS_QKV}", f"s_cselect_b32 s36, {WRING*WSTG}, 0", "s_sub_u32 s31, s31, s36"]
    for g in range(5):
        half = g % 2
        for s in dma_x(half) + dma_w() + adv_w(): k(s)
        if half == 1:
            for s in adv_x(False): k(s)
    for i in range(192):
        k(f"v_mov_b32 v{i}, 0")
    k("s_waitcnt vmcnt(35)")
    U = 240
    k("s_mov_b32 s41, 0xffff0000")
    k("s_mov_b32 s42, 0x3f803f80")
    k(f"v_mov_b32 v{U+8}, 0")
    k(f"v_mov_b32 v{U+9}, 0")
    for j in range(8):
        k(f"""
        v_lshlrev_b32 v{U}, 16, v{GW+j}
        v_and_b32 v{U+1}, s41, v{GW+j}
        """)
        for t in range(2):
            x = GX + t * 8 + j
            k(f"""
            v_lshlrev_b32 v{U+2+2*t}, 16, v{x}
            v_and_b32 v{U+3+2*t}, s41, v{x}
            v_mul_f32 v{U+2+2*t}, v{U+2+2*t}, v{U}
            v_mul_f32 v{U+3+2*t}, v{U+3+2*t}, v{U+1}
            v_cvt_pk_bf16_f32 v{U+6+t}, v{U+2+2*t}, v{U+3+2*t}
            v_lshlrev_b32 v{U+2+2*t}, 16, v{U+6+t}
            v_and_b32 v{U+3+2*t}, s41, v{U+6+t}
            v_add_f32 v{U+8+t}, v{U+8+t}, v{U+2+2*t}
            v_add_f32 v{U+8+t}, v{U+8+t}, v{U+3+2*t}
            """)
    for dpp in ["row_shr:1 row_mask:0xf bank_mask:0xf bound_ctrl:0", "row_shr:2 row_mask:0xf bank_mask:0xf bound_ctrl:0",
                "row_shr:4 row_mask:0xf bank_mask:0xf bound_ctrl:0", "row_shr:8 row_mask:0xf bank_mask:0xf bound_ctrl:0",
                "row_bcast:15 row_mask:0xa bank_mask:0xf", "row_bcast:31 row_mask:0xc bank_mask:0xf"]:
        k("s_nop 1")
        for t in range(2):
            k(f"v_add_f32_dpp v{U+8+t}, v{U+8+t}, v{U+8+t} {dpp}")
    k(f"""
    s_nop 1
    v_cvt_pk_bf16_f32 v{U}, v{U+8}, v{U+9}
    v_lshlrev_b32 v{U+2}, 16, v{U}
    v_and_b32 v{U+3}, s41, v{U}
    v_mul_f32 v{U+2}, 0xbfb8aa3b, v{U+2}
    v_mul_f32 v{U+3}, 0xbfb8aa3b, v{U+3}
    v_exp_f32 v{U+2}, v{U+2}
    v_exp_f32 v{U+3}, v{U+3}
    s_nop 0
    v_add_f32 v{U+2}, 1.0, v{U+2}
    v_add_f32 v{U+3}, 1.0, v{U+3}
    v_rcp_f32 v{U+2}, v{U+2}
    v_rcp_f32 v{U+3}, v{U+3}
    s_nop 0
    v_cvt_pk_bf16_f32 v{U}, v{U+2}, v{U+3}
    v_lshlrev_b32 v{U+4}, 16, v{U}          ; g tok0
    v_and_b32 v{U+6}, s41, v{U}             ; g tok1
    v_sub_f32 v{U+2}, 1.0, v{U+4}
    v_sub_f32 v{U+3}, 1.0, v{U+6}
    v_cvt_pk_bf16_f32 v{U}, v{U+2}, v{U+3}
    v_lshlrev_b32 v{U+5}, 16, v{U}          ; 1-g tok0
    v_and_b32 v{U+7}, s41, v{U}             ; 1-g tok1
    s_lshl_b32 s40, s39, 3
    s_add_u32 s40, s40, {GOFF}
    v_mov_b32 v{U+10}, 0
    s_lshl_b64 exec, 1, 63
    buffer_store_dwordx4 v[{U+4}:{U+7}], v{U+10}, s[12:15], s40 offen
    s_mov_b64 exec, -1
    """)
    def reads(f, ks, ksl):
        r = []
        def wrd(cb):
            return [f"ds_read_b64_tr_b16 {ar(WF(f,cb)+2*t,2)}, v{WA} offset:{ksl*6144 + t*1536 + cb*128}" for t in range(2)]
        def xrd(tb):
            return [f"ds_read_b128 {ar(XF(f,tb),4)}, v{XA} offset:{tb*4096}"]
        r += wrd(0) + xrd(0) + wrd(1) + wrd(2) + xrd(1) + xrd(2) + xrd(3)
        return r
    k(f"""
    s_mov_b32 s34, 0
    s_mov_b32 s35, {WBASE}
    v_mov_b32 v{XA}, v{XL}
    v_add_u32 v{WA}, s35, v{WL}
    s_waitcnt vmcnt(22)
    s_barrier
    """)
    for s in reads(0, 0, 0): k(s)

    def mfmas(f):
        r = []
        for tb in range(4):
            for cb in range(3):
                A, B = (ar(WF(f, cb), 4), ar(XF(f, tb), 4)) if cb < 2 else (ar(XF(f, tb), 4), ar(WF(f, cb), 4))
                r.append(f"v_mfma_f32_32x32x16_bf16 {vr(ACC(tb,cb),16)}, {A}, {B}, {vr(ACC(tb,cb),16)}")
        return r

    k.label("L_qkv_loop")
    for ks in range(4):
        f = ks % 2
        nks = (ks + 1) % 4
        pre = []
        fill = {}
        if ks in (1, 3):
            k(f"s_waitcnt vmcnt({21 if ks == 1 else 14}) lgkmcnt(0)")
            k("s_barrier")
            pre += [f"s_add_u32 s35, s35, {WSTG}", f"s_cmp_ge_u32 s35, {LDS_QKV}",
                    f"s_cselect_b32 s37, {WRING*WSTG}, 0", "s_sub_u32 s35, s35, s37"]
            if ks == 3:
                pre += [f"s_add_u32 s34, s34, {XSLAB}", f"s_cmp_ge_u32 s34, {WBASE}",
                        f"s_cselect_b32 s37, {WBASE}, 0", "s_sub_u32 s34, s34, s37"]
            pre += [f"v_add_u32 v{WA}, s35, v{WL}"]
        else:
            k("s_waitcnt lgkmcnt(0)")
        pre += [f"v_add_u32 v{XA}, s34, v{XL+nks}"]
        rd = reads(1 - f, nks, nks % 2)
        fill[0] = pre
        for g in range(5):
            fill.setdefault(1 + g, []).extend(rd[2 * g:2 * g + 2])
        if ks in (1, 3):
            half = 1 if ks == 1 else 0
            dx = dma_x(half)
            dw = dma_w()
            fill.setdefault(6, []).extend(dx[:3])
            fill.setdefault(7, []).extend(dx[3:5])
            fill.setdefault(8, []).extend(dx[5:] + dw[:2])
            fill.setdefault(9, []).extend(dw[2:4])
            fill.setdefault(10, []).extend(dw[4:] + adv_w())
            if half == 1:
                fill.setdefault(11, []).extend(adv_x(True))
        if ks == 3:
            fill.setdefault(11, []).extend(["s_add_u32 s27, s27, 1", "s_cmp_lt_u32 s27, 16"])
        for s in interleave(mfmas(f), fill): k(s)
    k("s_cbranch_scc1 L_qkv_loop")

    k(f"""
    s_nop 15
    s_lshl_b32 s36, s26, 1
    s_add_u32 s36, s36, s22            ; head
    s_lshl_b32 s37, s25, 5
    s_add_u32 s36, s36, s37            ; mat*32+head
    s_lshl_b32 s36, s36, 6
    s_lshl_b32 s37, s23, 3
    s_add_u32 s36, s36, s37
    s_lshl_b32 s37, s21, 2
    s_add_u32 s36, s36, s37
    s_lshl_b32 s38, s36, 11            ; Q offset
    s_lshl_b32 s39, s36, 12
    s_add_u32 s39, s39, {KVOFF}
    s_mov_b32 s40, {hex(f32bits(QSCALE))}
    """)
    for tb in range(4):
        for cb in range(3):
            b0 = ACC(tb, cb)
            if cb == 0:
                for i in range(16):
                    k(f"v_mul_f32 v{b0+i}, s40, v{b0+i}")
            for j in range(8):
                k(f"v_cvt_pk_bf16_f32 v{b0+j}, v{b0+2*j}, v{b0+2*j+1}")
            so = "s38" if cb == 0 else "s39"
            off = 0 if cb < 2 else 2048
            k(f"buffer_store_dwordx4 {vr(b0,4)}, v{ST}, s[12:15], {so} offen offset:{off}")
            k(f"buffer_store_dwordx4 {vr(b0+4,4)}, v{ST}, s[12:15], {so} offen offset:{off+1024}")
        k("s_add_u32 s38, s38, 2048")
        k("s_add_u32 s39, s39, 4096")
    k.label("L_qkv_end")
    k("s_endpgm")
    return kernel_text(k, 512, 256), ("qkv_kernel", 256, 256, LDS_QKV)
```

```python
import sys
from common import *
from k_qkv import gen_qkv
from k_attn import gen_attn
from k_out import gen_out

HEADER = open("gated_mix__sliding_block__mha_block__prompt.s.ref").read().split("; Override launch")[0]
def build(path="gated_mix__sliding_block__mha_block__prompt.s"):
    ks = [gen_qkv(), gen_attn(), gen_out()]
    s = HEADER
    for _, (name, grid, block, lds) in ks:
        s += f"; @launch kernel={name} grid=({grid},1,1) block=({block},1,1) lds={lds}\n"
    s += '.amdgcn_target "amdgcn-amd-amdhsa--gfx950"\n'
    for t, _ in ks:
        s += t
    open(path, "w").write(s)
if __name__ == "__main__":
    build(*sys.argv[1:])
```
